```python
import torch

def _softmax(x, axis=-1):
    return torch.softmax(x, dim=axis)
def _gelu(x):
    return torch.nn.functional.gelu(x, approximate="tanh")
def _silu(x):
    return torch.nn.functional.silu(x)
def _sigmoid(x):
    return torch.sigmoid(x)
def _layernorm(x, axis=-1, eps=1e-5):
    m = x.mean(dim=axis, keepdim=True)
    v = x.var(dim=axis, keepdim=True, unbiased=False)
    return (x - m) / torch.sqrt(v + eps)
def _scatter_add(tgt, idx, src, axis=0):
    return tgt.clone().index_add_(axis, idx, src)
def _segment_sum(src, seg, n):
    out = torch.zeros((n,) + src.shape[1:], dtype=src.dtype)
    return out.index_add_(0, seg, src)
def _pad(x, pw):
    flat = tuple(v for pair in reversed(pw) for v in pair)
    return torch.nn.functional.pad(x, flat)

kernel_name = 'standalone__paged_block_table_kv_radixattention__decode'

def setup_inputs():

    _w = (lambda a: (lambda t: t.to(torch.bfloat16) if t.is_floating_point() else t)(torch.as_tensor(a)))
    B, H, Hkv, Dh = 1, 16, 8, 256
    Lk = 8192
    bs = 16
    nb = max(2, Lk // bs)
    P = max(1, nb // 2)
    n_phys = P + B * (nb - P)
    shared = torch.arange(P, dtype=torch.int64)
    priv = P + torch.arange(B * (nb - P), dtype=torch.int64).reshape(B, nb - P)
    bt = torch.cat([torch.tile(shared[None, :], (B, 1)), priv], dim=1)
    ctx = nb * bs - (torch.arange(1, B + 1, dtype=torch.int64) * 2654435761) % max(1, (nb * bs - P * bs) // 2)
    return {
        "q": _w((lambda *s: torch.randn(*s, dtype=torch.bfloat16) * 0.8)(B, H, Dh)),
        "k_cache": _w((lambda *s: torch.randn(*s, dtype=torch.bfloat16) * 0.8)(n_phys, bs, Hkv, Dh)),
        "v_cache": _w((lambda *s: torch.randn(*s, dtype=torch.bfloat16) * 0.05)(n_phys, bs, Hkv, Dh)),
        "block_table": _w(bt.to(torch.int64)),
        "ctx_lens": _w(torch.as_tensor(ctx).to(torch.int64)),
    }

def reference(q, k_cache, v_cache, block_table, ctx_lens):
    B, H, Dh = q.shape
    n_phys, bs, Hkv, _ = k_cache.shape
    nb = block_table.shape[1]
    Lk = nb * bs
    rep = H // Hkv
    k = k_cache[block_table].reshape(B, Lk, Hkv, Dh)
    v = v_cache[block_table].reshape(B, Lk, Hkv, Dh)
    k = (lambda x, n, axis: torch.repeat_interleave(x, n, dim=axis))(k, rep, axis=2)
    v = (lambda x, n, axis: torch.repeat_interleave(x, n, dim=axis))(v, rep, axis=2)
    scores = torch.einsum("bhd,bkhd->bhk", q, k) * (Dh ** -0.5)
    pos = torch.arange(Lk)
    valid = pos[None, :] < ctx_lens[:, None]
    scores = torch.where(valid[:, None, :], scores, -1e9)
    p = _softmax(scores, axis=-1)
    return torch.einsum("bhk,bkhd->bhd", p, v)
```

```python
import sys

NAME = "standalone__paged_block_table_kv_radixattention__decode"
HEADER = open("cdna_kernels/%s.s.ref" % NAME).read().split("; Override launch")[0]

LOG2E_OVER_16 = 0x3DB8AA3B
NEG_INF = 0xFF800000
LDS_O, LDS_M, LDS_L = 0, 2048, 2056
WS_ML = 512 * 1024


def kd(name, vgpr, sgpr):
    acc = (vgpr + 3) // 4 * 4
    return f""".p2align 6
.amdhsa_kernel {name}
  .amdhsa_next_free_vgpr {vgpr}
  .amdhsa_next_free_sgpr {sgpr}
  .amdhsa_accum_offset {acc}
  .amdhsa_group_segment_fixed_size 0
  .amdhsa_kernarg_size 64
  .amdhsa_user_sgpr_count 2
  .amdhsa_user_sgpr_kernarg_segment_ptr 1
  .amdhsa_system_sgpr_workgroup_id_x 1
.end_amdhsa_kernel
"""


def main_kernel(pol=""):
    K0, V0, Q0 = 24, 56, 88
    L = []
    a = L.append
    a(f""".globl {NAME}_kernel
.p2align 8
.type {NAME}_kernel,@function
{NAME}_kernel:
    s_cmp_ge_u32 s2, 256
    s_cbranch_scc1 Lm_end
    s_load_dwordx16 s[4:19], s[0:1], 0
    v_readfirstlane_b32 s3, v0
    v_and_b32 v20, 15, v0                 ; j
    v_bfe_u32 v21, v0, 4, 2               ; g
    s_and_b32 s28, s2, 7
    s_lshr_b32 s29, s2, 6
    s_lshl_b32 s29, s29, 3
    s_or_b32 s28, s28, s29                ; split
    s_bfe_u32 s29, s2, 0x30003
    s_lshr_b32 s3, s3, 6                  ; wave
    s_lshl_b32 s30, s3, 5
    s_add_u32 s30, s30, s28
    s_lshl_b32 s31, s30, 2
    v_lshlrev_b32 v1, 12, v20
    v_lshl_add_u32 v1, v21, 4, v1         ; K offset: j*4096 + g*16
    v_lshlrev_b32 v2, 14, v21
    v_lshl_add_u32 v2, v20, 4, v2         ; V offset: g*16384 + j*16
    v_lshrrev_b32 v22, 3, v20             ; h
    v_lshlrev_b32 v3, 9, v22
    v_lshl_add_u32 v3, v21, 4, v3         ; Q offset: h*512 + g*16
    s_lshl_b32 s34, s29, 10
    v_add_u32 v3, s34, v3
    s_mov_b32 s22, 0x2000000
    s_mov_b32 s23, 0x20000
    s_mov_b32 s26, 0x2000000
    s_mov_b32 s27, 0x20000
    s_waitcnt lgkmcnt(0)
    s_load_dword s32, s[10:11], s31
    s_load_dword s33, s[12:13], 0""")
    for s in range(8):
        a(f"    global_load_dwordx4 v[{Q0+4*s}:{Q0+4*s+3}], v3, s[4:5] offset:{64*s}")
    a(f"""    s_mov_b32 s20, s6
    s_mov_b32 s21, s7
    s_mov_b32 s24, s8
    s_mov_b32 s25, s9
    v_lshlrev_b32 v23, 2, v0
    v_mov_b32 v8, 0
    v_mov_b32 v9, 0x{NEG_INF:x}
    v_lshrrev_b32 v10, 1, v0
    v_cmp_eq_u32 vcc, 0x100, v10
    s_mov_b32 s35, 0x204
    s_nop 0
    v_cndmask_b32 v8, v8, v9, vcc
    v_cmp_gt_u32 vcc, s35, v0
    s_and_saveexec_b64 s[36:37], vcc
    ds_write_b32 v23, v8
    s_mov_b64 exec, s[36:37]
    v_and_b32 v9, 1, v20
    v_lshlrev_b32 v9, 4, v9
    v_mov_b32 v10, 0xffff
    v_lshlrev_b32 v9, v9, v10
    v_bfe_u32 v10, v20, 1, 2
    v_cmp_eq_u32 s[38:39], 0, v10
    v_cmp_eq_u32 s[40:41], 1, v10
    v_cmp_eq_u32 s[42:43], 2, v10
    v_cmp_eq_u32 s[44:45], 3, v10
    v_cndmask_b32 v4, 0, v9, s[38:39]
    v_cndmask_b32 v5, 0, v9, s[40:41]
    v_cndmask_b32 v6, 0, v9, s[42:43]
    v_cndmask_b32 v7, 0, v9, s[44:45]
    s_lshl_b32 s34, s29, 9
    s_lshl_b32 s46, s30, 4
    s_waitcnt lgkmcnt(0)
    s_mov_b32 s47, 0x{LOG2E_OVER_16:x}
    s_cmp_lt_i32 s33, 1
    s_cselect_b32 s47, 0, s47
    s_cselect_b32 s33, 0x2000, s33
    s_cmp_ge_u32 s46, s33
    s_cbranch_scc1 Lm_idle
    s_lshl_b32 s32, s32, 16
    s_add_u32 s32, s32, s34""")
    for s in range(8):
        a(f"    buffer_load_dwordx4 v[{K0+4*s}:{K0+4*s+3}], v1, s[20:23], s32 offen offset:{64*s}{pol}")
    a("""    s_add_u32 s48, s32, 0x1000
    s_add_u32 s49, s32, 0x2000
    s_add_u32 s50, s32, 0x3000
    s_barrier""")
    so = ["s32", "s48", "s49", "s50"]
    for r in range(4):
        for half in range(2):
            n = r * 2 + half
            a(f"    buffer_load_dwordx4 v[{V0+4*n}:{V0+4*n+3}], v2, s[24:27], {so[r]} offen offset:{256*half}{pol}")
    a("""    s_sub_u32 s51, s33, s46
    v_lshlrev_b32 v23, 2, v21
    v_sub_u32 v23, s51, v23
    v_cmp_lt_i32 s[38:39], 0, v23
    v_cmp_lt_i32 s[40:41], 1, v23
    v_cmp_lt_i32 s[42:43], 2, v23
    v_cmp_lt_i32 s[44:45], 3, v23""")
    for s in range(8):
        a(f"    s_waitcnt vmcnt({15-s})")
        c = "0" if s == 0 else "v[8:11]"
        a(f"    v_mfma_f32_16x16x32_bf16 v[8:11], v[{K0+4*s}:{K0+4*s+3}], v[{Q0+4*s}:{Q0+4*s+3}], {c}")
    a(f"""    v_mov_b32 v23, 0x{NEG_INF:x}
    v_lshlrev_b32 v22, 2, v22             ; h*4
    s_nop 6
    v_mul_f32 v8, s47, v8
    v_mul_f32 v9, s47, v9
    v_mul_f32 v10, s47, v10
    v_mul_f32 v11, s47, v11
    v_cndmask_b32 v8, v23, v8, s[38:39]
    v_cndmask_b32 v9, v23, v9, s[40:41]
    v_cndmask_b32 v10, v23, v10, s[42:43]
    v_cndmask_b32 v11, v23, v11, s[44:45]
    v_max3_f32 v23, v8, v9, v10
    v_max_f32 v23, v23, v11
    s_mov_b32 s36, 0x01010101
    s_mov_b32 s37, 0x01010101
    s_mov_b64 exec, s[36:37]
    ds_max_f32 v22, v23 offset:{LDS_M}
    s_mov_b64 exec, -1
    s_waitcnt lgkmcnt(0)
    s_barrier
    ds_read_b32 v23, v22 offset:{LDS_M}
    v_and_b32 v3, 63, v0
    v_lshlrev_b32 v3, 2, v3
    s_waitcnt lgkmcnt(0)
    v_sub_f32 v8, v8, v23
    v_sub_f32 v9, v9, v23
    v_sub_f32 v10, v10, v23
    v_sub_f32 v11, v11, v23
    v_exp_f32 v8, v8
    v_exp_f32 v9, v9
    v_exp_f32 v10, v10
    v_exp_f32 v11, v11
    v_add_f32 v23, v8, v9
    v_add_f32 v23, v23, v10
    v_add_f32 v23, v23, v11
    s_mov_b64 exec, s[36:37]
    ds_add_f32 v22, v23 offset:{LDS_L}
    s_mov_b64 exec, -1""")
    for r in range(4):
        a(f"    v_cvt_pk_bf16_f32 v{8+r}, v{8+r}, v{8+r}")
    for r in range(4):
        for i in range(4):
            a(f"    v_and_b32 v{K0+4*r+i}, v{8+r}, v{4+i}")
    for r in range(4):
        for half in range(2):
            n = r * 2 + half
            a(f"    s_waitcnt vmcnt({7-n})")
            d = f"v[{12+4*half}:{15+4*half}]"
            c = "0" if r == 0 else d
            a(f"    v_mfma_f32_16x16x32_bf16 {d}, v[{K0+4*r}:{K0+4*r+3}], v[{V0+4*n}:{V0+4*n+3}], {c}")
    a("    s_nop 6")
    for n in range(8):
        a(f"    ds_add_f32 v3, v{12+n} offset:{LDS_O+256*n}")
    a(f"""Lm_join:
    s_waitcnt lgkmcnt(0)
    s_barrier
    s_cmp_ge_u32 s3, 3
    s_cbranch_scc1 Lm_end
    s_lshl_b32 s34, s29, 5
    s_cmp_eq_u32 s3, 2
    s_cbranch_scc1 Lm_ml
    v_and_b32 v3, 63, v0
    v_lshlrev_b32 v3, 2, v3
    s_lshl_b32 s35, s3, 10
    v_add_u32 v3, s35, v3
    ds_read2st64_b32 v[8:9], v3 offset0:0 offset1:1
    ds_read2st64_b32 v[10:11], v3 offset0:2 offset1:3
    s_add_u32 s34, s34, s28
    s_lshl_b32 s34, s34, 11
    s_lshl_b32 s35, s3, 9
    s_add_u32 s34, s34, s35
    v_lshrrev_b32 v1, 1, v21
    v_lshlrev_b32 v1, 10, v1              ; h*1024
    v_and_b32 v2, 1, v21
    v_lshl_add_u32 v1, v2, 4, v1
    v_lshl_add_u32 v1, v20, 5, v1
    v_add_u32 v1, s34, v1
    s_waitcnt lgkmcnt(0)
    global_store_dwordx4 v1, v[8:11], s[18:19]
    s_endpgm
Lm_ml:
    v_and_b32 v3, 1, v0
    v_lshlrev_b32 v1, 2, v3
    ds_read_b32 v8, v1 offset:{LDS_M}
    ds_read_b32 v9, v1 offset:{LDS_L}
    s_lshl_b32 s34, s34, 1
    s_add_u32 s34, s34, s28
    s_lshl_b32 s34, s34, 3
    s_add_u32 s34, s34, {WS_ML}
    v_lshlrev_b32 v1, 8, v3
    v_add_u32 v1, s34, v1
    s_mov_b64 exec, 3
    s_waitcnt lgkmcnt(0)
    global_store_dwordx2 v1, v[8:9], s[18:19]
    s_endpgm
Lm_idle:
    s_barrier
    s_barrier
    s_branch Lm_join
Lm_end:
    s_endpgm
""")
    return "\n".join(L)


def xreduce(op, regs, tmp):
    L = []
    a = L.append
    n = len(regs)
    a("    s_nop 1")
    for r in regs:
        a(f"    {op}_dpp v{r}, v{r}, v{r} row_ror:8 row_mask:0xf bank_mask:0xf")
    for swap in ("v_permlane16_swap_b32", "v_permlane32_swap_b32"):
        for r, t in zip(regs, tmp):
            a(f"    v_mov_b32 v{t}, v{r}")
        a("    s_nop 1")
        for r, t in zip(regs, tmp):
            a(f"    {swap} v{r}, v{t}")
        a("    s_nop 0")
        for r, t in zip(regs, tmp):
            a(f"    {op} v{r}, v{r}, v{t}")
    return "\n".join(L)


def combine_kernel():
    L = []
    a = L.append
    a(f""".globl combine_kernel
.p2align 8
.type combine_kernel,@function
combine_kernel:
    s_cmp_ge_u32 s2, 128
    s_cbranch_scc1 Lc_end
    s_load_dwordx2 s[4:5], s[0:1], 40
    s_load_dwordx2 s[6:7], s[0:1], 56
    s_lshr_b32 s8, s2, 3                  ; q head
    s_and_b32 s9, s2, 7                   ; d slice
    v_lshrrev_b32 v1, 3, v0
    v_and_b32 v2, 7, v0
    s_lshr_b32 s10, s8, 1
    s_lshl_b32 s10, s10, 16
    s_and_b32 s11, s8, 1
    s_lshl_b32 s11, s11, 10
    s_add_u32 s10, s10, s11
    s_lshl_b32 s11, s9, 7
    s_add_u32 s10, s10, s11
    v_lshlrev_b32 v3, 13, v1
    v_lshl_add_u32 v3, v2, 4, v3
    v_add_u32 v3, s10, v3
    v_add_u32 v4, 0x1000, v3
    s_lshl_b32 s11, s8, 8
    s_add_u32 s11, s11, {WS_ML}
    v_lshlrev_b32 v5, 5, v1
    v_add_u32 v5, s11, v5
    s_lshl_b32 s12, s8, 9
    s_lshl_b32 s13, s9, 6
    s_add_u32 s12, s12, s13
    v_lshlrev_b32 v6, 3, v2
    v_add_u32 v6, s12, v6
    s_waitcnt lgkmcnt(0)
    global_load_dwordx4 v[8:11], v5, s[6:7]
    global_load_dwordx4 v[12:15], v5, s[6:7] offset:16
    global_load_dwordx4 v[16:19], v3, s[6:7]
    global_load_dwordx4 v[20:23], v3, s[6:7] offset:2048
    global_load_dwordx4 v[24:27], v4, s[6:7]
    global_load_dwordx4 v[28:31], v4, s[6:7] offset:2048
    s_waitcnt vmcnt(4)
    v_max3_f32 v32, v8, v10, v12
    v_max_f32 v32, v32, v14""")
    a(xreduce("v_max_f32", [32], [33]))
    a("""    v_sub_f32 v8, v8, v32
    v_sub_f32 v10, v10, v32
    v_sub_f32 v12, v12, v32
    v_sub_f32 v14, v14, v32
    v_exp_f32 v8, v8
    v_exp_f32 v10, v10
    v_exp_f32 v12, v12
    v_exp_f32 v14, v14
    v_mul_f32 v32, v8, v9
    v_fmac_f32 v32, v10, v11
    v_fmac_f32 v32, v12, v13
    v_fmac_f32 v32, v14, v15
    s_waitcnt vmcnt(0)""")
    for c in range(4):
        a(f"    v_mul_f32 v{33+c}, v8, v{16+c}")
    for i in range(1, 4):
        for c in range(4):
            a(f"    v_fmac_f32 v{33+c}, v{8+2*i}, v{16+4*i+c}")
    a(xreduce("v_add_f32", [32, 33, 34, 35, 36], [8, 9, 10, 11, 12]))
    a("""    v_rcp_f32 v32, v32
    s_nop 0
    v_mul_f32 v33, v33, v32
    v_mul_f32 v34, v34, v32
    v_mul_f32 v35, v35, v32
    v_mul_f32 v36, v36, v32
    v_cvt_pk_bf16_f32 v8, v33, v34
    v_cvt_pk_bf16_f32 v9, v35, v36
    s_mov_b64 exec, 0xff
    global_store_dwordx2 v6, v[8:9], s[4:5]
Lc_end:
    s_endpgm
""")
    return "\n".join(L)


def build(pol=""):
    out = [HEADER.rstrip("\n")]
    out.append(f"; @launch kernel={NAME}_kernel grid=(256,1,1) block=(1024,1,1) lds=2064")
    out.append("; @launch kernel=combine_kernel grid=(128,1,1) block=(64,1,1) lds=0")
    out.append('.amdgcn_target "amdgcn-amd-amdhsa--gfx950"')
    out.append(".text")
    out.append(main_kernel(pol))
    out.append(combine_kernel())
    out.append('.section .rodata,"a"')
    out.append(kd(NAME + "_kernel", 120, 56))
    out.append(kd("combine_kernel", 40, 24))
    return "\n".join(out)


if __name__ == "__main__":
    path = sys.argv[1]
    pol = (" " + sys.argv[2]) if len(sys.argv) > 2 else ""
    open(path, "w").write(build(pol))
```

```python
import sys

NAME = "standalone__paged_block_table_kv_radixattention__decode"
HEADER = open("cdna_kernels/%s.s.ref" % NAME).read().split("; Override launch")[0]

DOC = """;
;
;"""

LOG2E_OVER_16 = 0x3DB8AA3B
NEG_INF = 0xFF800000
NEG_BIG = 0xFF61B1E6
EPOCH_STEP, TAG_KEY = 0x01010101, 0x734F92D6
KV_BYTES = 0x2000000
WS_ID, WS_LSE, WS_BOX = 128, 512, 1 << 16
LDS_ML, LDS_CNT, LDS_REC, LDS_O = 0, 128, 256, 1024
THROTTLE = 9

V_KOFF, V_VOFF, V_T0, V_T1 = 1, 2, 3, 4
V_J, V_G = 5, 6
V_SCALE, V_NINF, V_G4 = 7, 8, 9
V_M, V_L = 10, 11
V_MASK = 12
V_DA, V_DB = 16, 20
V_X = 24
V_A = 40
V_O = 56
V_Q = 64
V_BUF = 80
V_TAG, V_PA, V_ID = V_SCALE, V_KOFF, V_O
V_LW, V_LR = V_NINF, V_G4

S_Q, S_BT, S_CTX, S_OUT, S_WS = 4, 8, 10, 12, 16
S_WAVE, S_SP, S_HK = 3, 28, 29
S_TAG, S_GRP, S_BASE, S_NEXT = 38, 39, 40, 41
S_ID, S_LOCAL = 50, 51
DPP = "row_mask:0xf bank_mask:0xf"


def vr(a, n=4):
    return f"v[{a}:{a+n-1}]"


def sp(a):
    return f"s[{a}:{a+1}]"


class Gen:
    def __init__(self):
        self.L = []
        self.nload = 0

    def a(self, s):
        self.L.append(s)

    def note(self, s):
        self.a(f"    ; {s}")

    def throttle(self):
        if self.nload >= THROTTLE:
            self.a(f"    s_waitcnt vmcnt({THROTTLE})")
        self.nload += 4

    def kloads(self, p):
        a = self.a
        b = V_BUF + 32 * p
        if p >= 2:
            a(f"    s_mov_b32 s22, s{44+p}")
        for half in range(2):
            if p or half:
                a(f"    s_add_u32 s48, s{S_BASE}, 0x{0x800000*p + 0x8000*half:x}")
            self.throttle()
            for n in range(4):
                so = "s48" if (p or half) else f"s{S_BASE}"
                a(f"    buffer_load_dwordx4 {vr(b+16*half+4*n)}, v{V_KOFF}, s[20:23], {so} offen offset:{128*n} nt")

    def vloads(self, p):
        a = self.a
        b = V_BUF + 32 * p
        a(f"    s_mov_b32 s26, s{44+p}")
        for r in range(4):
            if p or r:
                a(f"    s_add_u32 s48, s{S_BASE}, 0x{0x800000*p + 0x1000*r:x}")
            if r % 2 == 0:
                self.throttle()
            for half in range(2):
                so = "s48" if (p or r) else f"s{S_BASE}"
                a(f"    buffer_load_dwordx4 {vr(b+8*r+4*half)}, v{V_VOFF}, s[24:27], {so} offen offset:{256*half} nt")

    def qk(self, p):
        a = self.a
        b = V_BUF + 32 * p
        rec, x = V_A + 4 * p, V_X + 4 * p
        a(f"    v_sub_u32 v{rec+2}, v{rec+2}, v{V_G4}")
        a("    s_waitcnt vmcnt(16)")
        for n in range(4):
            for half, d in ((0, V_DA), (1, V_DB)):
                c = "0" if n == 0 else vr(d)
                a(f"    v_mfma_f32_16x16x32_bf16 {vr(d)}, {vr(b+16*half+4*n)}, {vr(V_Q+4*n)}, {c}")
        for r in range(4):
            a(f"    v_cmp_lt_i32 {sp(52+2*r)}, {r}, v{rec+2}")
        for r in range(4):
            a(f"    v_cndmask_b32 v{x+r}, v{rec+1}, v{rec}, {sp(52+2*r)}")
        for r in range(4):
            a(f"    v_permlane32_swap_b32 v{V_DA+r}, v{V_DB+r}")
        for r in range(4):
            a(f"    v_add_f32_dpp v{V_DA+r}, v{V_DB+r}, v{V_DA+r} quad_perm:[1,0,3,2] {DPP}")
        for r in range(4):
            a(f"    v_cmp_lt_f32 {sp(52+2*r)}, v{V_NINF}, v{x+r}")
        for r in range(4):
            a(f"    v_cvt_pk_bf16_f32 v{V_DA+r}, 0, v{V_DA+r}")
        for r in range(4):
            a(f"    v_cndmask_b32 v{V_DA+r}, 0, v{V_DA+r}, {sp(52+2*r)}")
        for r in range(4):
            a(f"    v_fmac_f32_dpp v{x+r}, v{V_DA+r}, v{V_SCALE} quad_perm:[0,0,2,2] {DPP}")
        a(f"    v_max3_f32 v{V_M}, v{V_M}, v{x}, v{x+1}")
        a(f"    v_max3_f32 v{V_M}, v{V_M}, v{x+2}, v{x+3}")

    def rows_reduce(self, op, reg, tmp):
        a = self.a
        for swap in ("v_permlane16_swap_b32", "v_permlane32_swap_b32"):
            a(f"    v_mov_b32 v{tmp}, v{reg}")
            a("    s_nop 1")
            a(f"    {swap} v{reg}, v{tmp}")
            a(f"    {op} v{reg}, v{reg}, v{tmp}")

    def handoff_store(self, ins, label):
        self.a(f"""    s_cbranch_scc0 {label}_far
    {ins}
    s_branch {label}_done
{label}_far:
    {ins} sc1
{label}_done:""")

    def softmax(self):
        a = self.a
        t = V_A
        self.rows_reduce("v_max_f32", V_M, V_T0)
        for i in range(16):
            a(f"    v_sub_f32 v{V_X+i}, v{V_X+i}, v{V_M}")
        for i in range(16):
            a(f"    v_exp_f32 v{V_X+i}, v{V_X+i}")
        a(f"    v_add_f32 v{V_L}, v{V_X}, v{V_X+1}")
        a(f"    v_add_f32 v{V_T1}, v{V_X+2}, v{V_X+3}")
        for i in range(4, 16, 2):
            a(f"    v_add_f32 v{V_L}, v{V_L}, v{V_X+i}")
            a(f"    v_add_f32 v{V_T1}, v{V_T1}, v{V_X+i+1}")
        a(f"    v_add_f32 v{V_L}, v{V_L}, v{V_T1}")
        self.rows_reduce("v_add_f32", V_L, V_T0)
        a(f"""    v_lshrrev_b32 v{V_DA}, 3, v{V_J}
    v_lshlrev_b32 v{V_T0}, 5, v{V_DA}
    s_lshl_b32 s35, s{S_WAVE}, 3
    v_add_u32 v{V_T1}, s35, v{V_T0}
    ds_write_b64 v{V_T1}, v[{V_M}:{V_L}] offset:{LDS_ML}
    s_and_b32 s35, s{S_SP}, 15
    s_lshl_b32 s35, s35, 4
    s_lshr_b32 s36, s{S_SP}, 4
    s_lshl_b32 s36, s36, 3
    s_add_u32 s35, s35, s36
    s_add_u32 s35, s35, s{S_GRP}
    v_lshl_add_u32 v{V_DA}, v{V_DA}, 8, s35
    v_mov_b32 v{V_TAG}, s{S_TAG}
    s_waitcnt lgkmcnt(0)
    s_barrier
    ds_read_b128 {vr(t)}, v{V_T0} offset:{LDS_ML}
    ds_read_b128 {vr(t+4)}, v{V_T0} offset:{LDS_ML+16}
    s_waitcnt lgkmcnt(0)
    v_max3_f32 v{V_T0}, v{t}, v{t+2}, v{t+4}
    v_max_f32 v{V_T0}, v{V_T0}, v{t+6}""")
        for i in range(4):
            a(f"    v_sub_f32 v{t+2*i}, v{t+2*i}, v{V_T0}")
        a(f"    v_sub_f32 v{V_M}, v{V_M}, v{V_T0}")
        for i in range(4):
            a(f"    v_exp_f32 v{t+2*i}, v{t+2*i}")
        a(f"    v_exp_f32 v{V_M}, v{V_M}")
        a(f"    v_mul_f32 v{V_L}, v{t}, v{t+1}")
        for i in range(1, 4):
            a(f"    v_fmac_f32 v{V_L}, v{t+2*i}, v{t+2*i+1}")
        a(f"""    v_max_f32 v{V_T1}, 1.0, v{V_L}
    v_log_f32 v{V_L}, v{V_L}
    v_rcp_f32 v{V_T1}, v{V_T1}
    v_add_f32 v{V_DB}, v{V_L}, v{V_T0}
    v_mul_f32 v{V_M}, v{V_M}, v{V_T1}
    v_mov_b32 v{V_DB+1}, s{S_TAG}""")
        for i in range(16):
            a(f"    v_mul_f32 v{V_X+i}, v{V_X+i}, v{V_M}")
        for i in range(16):
            a(f"    v_cvt_pk_bf16_f32 v{V_X+i}, v{V_X+i}, v{V_X+i}")

    def aops(self, p):
        self.note(f"diagonal A operands of tile {p}")
        for r in range(4):
            for i in range(4):
                self.a(f"    v_and_b32 v{V_A+4*r+i}, v{V_X+4*p+r}, v{V_MASK+i}")

    def pv(self, p, cnts):
        a = self.a
        b = V_BUF + 32 * p
        for r in range(4):
            for half in range(2):
                n = 2 * r + half
                if n in cnts:
                    a(f"    s_waitcnt vmcnt({cnts[n]})")
                d = vr(V_O + 4 * half)
                c = "0" if (p == 0 and r == 0) else d
                a(f"    v_mfma_f32_16x16x32_bf16 {d}, {vr(V_A+4*r)}, {vr(b+8*r+4*half)}, {c}")

    def records(self):
        a = self.a
        a(f"""    s_lshl_b32 s35, s{S_WAVE}, 6
    v_mov_b32 v{V_T1}, s35
    s_barrier""")
        for p in range(4):
            a(f"    ds_read_b128 {vr(V_A+4*p)}, v{V_T1} offset:{LDS_REC+16*p}")
        a(f"""    s_waitcnt lgkmcnt(0)
    s_add_u32 s{S_TAG}, s{S_TAG}, 0x{EPOCH_STEP:08x}
    s_xor_b32 s{S_TAG}, s{S_TAG}, 0x{TAG_KEY:08x}
    s_cmp_lt_i32 s33, 1
    s_cselect_b32 s37, 0, 0x{LOG2E_OVER_16:x}""")
        for p in range(4):
            a(f"    v_readfirstlane_b32 s{44+p}, v{V_A+4*p+3}")
        a(f"    v_mov_b32 v{V_SCALE}, s37")

    def stream(self):
        a = self.a
        a(f""".globl {NAME}_kernel
.p2align 12
.p2align 8
.type {NAME}_kernel,@function
{NAME}_kernel:
    s_load_dwordx2 s[20:21], s[0:1], 8
    s_cmp_ge_u32 s2, 256
    s_cbranch_scc1 Lm_end
    v_readfirstlane_b32 s{S_WAVE}, v0
    s_lshr_b32 s{S_SP}, s2, 3                   ; split
    s_and_b32 s{S_HK}, s2, 7
    s_lshl_b32 s{S_GRP}, s{S_HK}, 10
    s_lshr_b32 s{S_WAVE}, s{S_WAVE}, 6
    s_cmp_eq_u32 s{S_WAVE}, 4
    s_cbranch_scc1 Lh_table
    v_bfe_u32 v{V_G}, v0, 4, 2
    v_and_b32 v{V_T0}, 7, v0
    v_lshlrev_b32 v{V_KOFF}, 12, v{V_T0}
    v_bfe_u32 v{V_T0}, v0, 3, 1
    v_lshl_add_u32 v{V_KOFF}, v{V_T0}, 6, v{V_KOFF}
    v_lshl_add_u32 v{V_KOFF}, v{V_G}, 4, v{V_KOFF}            ; K: (j&7)*4096 + (j>>3)*64 + g*16
    s_lshl_b32 s{S_BASE}, s{S_WAVE}, 5
    s_add_u32 s{S_BASE}, s{S_BASE}, s{S_SP}
    s_lshl_b32 s{S_BASE}, s{S_BASE}, 7
    s_add_u32 s{S_BASE}, s{S_BASE}, s{S_HK}
    s_lshl_b32 s{S_BASE}, s{S_BASE}, 9
    s_mov_b32 s22, 0x{KV_BYTES:x}
    s_mov_b32 s23, 0x20000
    s_mov_b32 s27, 0x20000
    v_and_b32 v{V_J}, 15, v0
    v_lshlrev_b32 v{V_T0}, 9, v{V_T0}
    v_and_b32 v{V_T1}, 1, v0
    v_lshl_add_u32 v{V_T0}, v{V_T1}, 6, v{V_T0}
    v_lshl_add_u32 v{V_T0}, v{V_G}, 4, v{V_T0}
    v_add_u32 v{V_T0}, s{S_GRP}, v{V_T0}                   ; Q: head*1024 + (j>>3)*512 + (j&1)*64 + g*16
    v_lshlrev_b32 v{V_VOFF}, 14, v{V_G}
    v_lshl_add_u32 v{V_VOFF}, v{V_J}, 4, v{V_VOFF}            ; V: g*16384 + j*16
    v_lshlrev_b32 v{V_T1}, 4, v{V_T1}
    v_mov_b32 v{V_M}, 0xffff
    v_lshlrev_b32 v{V_T1}, v{V_T1}, v{V_M}
    v_bfe_u32 v{V_M}, v0, 1, 2""")
        for i in range(4):
            a(f"    v_cmp_eq_u32 {sp(52+2*i)}, {i}, v{V_M}")
        a(f"    v_mov_b32 v{V_NINF}, 0x{NEG_INF:x}")
        a(f"    v_mov_b32 v{V_M}, 0x{NEG_BIG:x}")
        for i in range(4):
            a(f"    v_cndmask_b32 v{V_MASK+i}, 0, v{V_T1}, {sp(52+2*i)}")
        a(f"""    v_lshlrev_b32 v{V_G4}, 2, v{V_G}
    s_waitcnt lgkmcnt(0)""")
        self.kloads(0)
        a(f"""    s_load_dwordx2 s[24:25], s[0:1], 16
    s_load_dwordx2 {sp(S_Q)}, s[0:1], 0
    s_load_dwordx2 {sp(S_CTX)}, s[0:1], 32
    s_load_dwordx2 {sp(S_WS)}, s[0:1], 56
    s_waitcnt lgkmcnt(0)
    s_load_dword s{S_TAG}, {sp(S_WS)}, s{S_GRP}
    s_load_dword s33, {sp(S_CTX)}, 0""")
        for n in range(4):
            a(f"    global_load_dwordx4 {vr(V_Q+4*n)}, v{V_T0}, {sp(S_Q)} offset:{128*n}")
        self.kloads(1)
        a("    s_branch Lm_b")
        self.helper_table()
        a("Lm_b:")
        self.records()
        self.kloads(2)
        self.qk(0)
        self.kloads(3)
        a(f"""    v_and_b32 v{V_T0}, 31, v0
    v_lshl_add_u32 v{V_T0}, v{V_T0}, 2, s{S_GRP}
    s_getreg_b32 s{S_ID}, hwreg(HW_REG_XCC_ID, 0, 4)
    s_and_b32 s35, s{S_TAG}, 0xffffff
    s_lshl_b32 s{S_ID}, s{S_ID}, 24
    s_or_b32 s{S_ID}, s{S_ID}, s35
    global_load_dword v{V_ID}, v{V_T0}, {sp(S_WS)} offset:{WS_ID} sc1""")
        self.qk(1)
        self.vloads(0)
        a(f"""    s_lshl_b32 s35, s{S_HK}, 1
    s_and_b32 s36, s{S_WAVE}, 1
    s_add_u32 s35, s35, s36
    s_lshl_b32 s35, s35, 9
    s_add_u32 s35, s35, s{S_SP}
    s_lshl_b32 s35, s35, 6
    s_add_u32 s35, s35, 0x{WS_BOX:x}
    v_and_b32 v{V_PA}, 3, v0
    v_lshl_add_u32 v{V_PA}, v{V_PA}, 4, s35
    v_bfe_u32 v{V_T1}, v0, 2, 4
    v_lshl_add_u32 v{V_PA}, v{V_T1}, 11, v{V_PA}""")
        self.qk(2)
        self.vloads(1)
        a(f"""    s_waitcnt vmcnt(16)
    v_cmp_ne_u32 vcc, s{S_ID}, v{V_ID}
    s_cmp_eq_u64 vcc, 0
    s_cselect_b32 s{S_LOCAL}, 1, 0
    s_branch Lm_c""")
        a(".p2align 12")
        self.helper_merge()
        a("Lm_c:")
        self.qk(3)
        self.vloads(2)
        self.softmax()
        self.aops(0)
        a(f"""    s_cmp_lg_u32 s{S_WAVE}, 3
    s_cbranch_scc1 Lm_nolse
    s_mov_b64 exec, 0x101
    s_cmp_lg_u32 s{S_LOCAL}, 0""")
        self.handoff_store(f"global_store_dwordx2 v{V_DA}, v[{V_DB}:{V_DB+1}], {sp(S_WS)} offset:{WS_LSE}", "Lm_lse")
        a("""    s_mov_b64 exec, -1
Lm_nolse:""")
        self.pv(0, {0: 16})
        self.vloads(3)
        a(f"""    s_lshl_b32 s35, s{S_HK}, 5
    s_add_u32 s35, s35, s{S_SP}
    s_lshl_b32 s35, s35, 2
    s_add_u32 s35, s35, s{S_WAVE}
    s_lshl_b32 s35, s35, 9
    s_add_u32 s35, s35, 0x{WS_BOX:x}
    v_lshl_add_u32 v{V_T0}, v{V_J}, 7, s35
    s_mov_b64 exec, 15
    global_load_dword v{V_T1}, v{V_T0}, {sp(S_WS)} sc1
    s_mov_b64 exec, -1
    v_and_b32 v{V_LW}, 63, v0
    v_lshlrev_b32 v{V_LW}, 4, v{V_LW}
    s_lshl_b32 s35, s{S_WAVE}, 12
    v_add_u32 v{V_LR}, s35, v{V_LW}
    s_lshl_b32 s35, s{S_WAVE}, 10
    v_add_u32 v{V_LW}, s35, v{V_LW}""")
        for k in range(4):
            a(f"    s_mov_b32 s{52+k}, 0x0706050{k}")
        self.aops(1)
        self.pv(1, {0: 17})
        self.aops(2)
        self.pv(2, {0: 9})
        self.aops(3)
        self.pv(3, {n: 8 - n for n in range(8)})
        t = V_A

        def pk_add(d, x, y):
            for k in range(0, 4, 2):
                a(f"    v_pk_add_f32 v[{d+k}:{d+k+1}], v[{x+k}:{x+k+1}], v[{y+k}:{y+k+1}]")

        a(f"""    s_cmp_eq_u32 s{S_WAVE}, 0
    s_cbranch_scc1 Lm_w0
    s_cmp_eq_u32 s{S_WAVE}, 1
    s_nop 2
    ds_write_b128 v{V_LW}, {vr(V_O)} offset:{LDS_O}
    s_cbranch_scc1 Lm_w1
    ds_write_b128 v{V_LW}, {vr(V_O+4)} offset:{LDS_O+4096}
    s_waitcnt lgkmcnt(0)
    s_barrier
Lm_end:
    s_endpgm""")
        for w in (1, 0):
            keep = V_O + 4 * w
            a(f"Lm_w{w}:")
            if w == 0:
                a("    s_nop 5")
                a(f"    ds_write_b128 v{V_LW}, {vr(V_O+4)} offset:{LDS_O+4096}")
            a(f"""    s_cmp_lg_u32 s{S_LOCAL}, 0
    s_waitcnt lgkmcnt(0)
    s_barrier""")
            for n, i in enumerate(i for i in range(4) if i != w):
                a(f"    ds_read_b128 {vr(t+4*n)}, v{V_LR} offset:{LDS_O+1024*i}")
            a("    s_waitcnt lgkmcnt(2)")
            pk_add(keep, keep, t)
            a("    s_waitcnt lgkmcnt(0)")
            pk_add(t + 4, t + 4, t + 8)
            pk_add(keep, keep, t + 4)
            for k in range(4):
                a(f"    v_perm_b32 v{keep+k}, v{keep+k}, v{V_TAG}, s{52+k}")
            a(f"""    s_cbranch_scc0 Lm_far{w}
    global_store_dwordx4 v{V_PA}, {vr(keep)}, {sp(S_WS)}
    s_endpgm
Lm_far{w}:
    global_store_dwordx4 v{V_PA}, {vr(keep)}, {sp(S_WS)} sc1
    s_endpgm""")

    def helper_table(self):
        a = self.a
        D, E = 32, 48
        a("Lh_table:")
        a(f"""    s_setprio 3
    s_load_dwordx4 s[{S_BT}:{S_BT+3}], s[0:1], 24
    s_load_dwordx2 {sp(S_OUT)}, s[0:1], 40
    s_load_dwordx2 {sp(S_WS)}, s[0:1], 56
    v_and_b32 v0, 63, v0
    v_lshlrev_b32 v1, 4, v0
    v_lshlrev_b32 v2, 2, v0
    v_mov_b32 v9, 0
    s_waitcnt lgkmcnt(0)
    global_load_dwordx4 {vr(E)}, v1, {sp(S_BT)}
    global_load_dwordx4 {vr(E+4)}, v1, {sp(S_BT)} offset:1024
    s_load_dword s33, {sp(S_CTX)}, 0
    s_load_dword s{S_TAG}, {sp(S_WS)}, s{S_GRP}
    ds_write_b32 v2, v9 offset:{LDS_CNT}
    v_and_b32 v6, 3, v0
    v_bfe_u32 v11, v0, 2, 2
    v_lshl_add_u32 v11, v6, 2, v11
    v_lshlrev_b32 v11, 2, v11
    v_mov_b32 v10, 0x{KV_BYTES:x}
    s_movk_i32 s37, 0xfe1f
    s_waitcnt lgkmcnt(0)
    s_cmp_lt_i32 s33, 1
    s_cselect_b32 s33, 0x2000, s33
    s_min_u32 s33, s33, 0x2000
    s_and_b32 s36, s33, 15
    s_lshl_b32 s36, s36, 16
    s_lshr_b32 s33, s33, 4
    v_sub_u32 v12, s33, v2
    v_mov_b32 v13, s36""")
        for k in range(8):
            if k == 4:
                a("    v_subrev_u32 v12, 0x100, v12")
            a(f"""    v_cmp_eq_u32 vcc, {k & 3}, v12
    v_cmp_lt_i32 s[52:53], {k & 3}, v12
    s_nop 0
    v_cndmask_b32 v{D+k}, 0, v13, vcc
    v_cndmask_b32 v{D+k}, v{D+k}, 1, s[52:53]""")
        for k in range(8):
            e = E + k
            if k % 4 == 0:
                a(f"    s_waitcnt vmcnt({1 - k // 4})")
            a(f"""    v_lshrrev_b32 v15, 3, v{e}
    v_and_b32 v{e}, s37, v{e}
    v_and_b32 v15, 60, v15
    v_cmp_eq_u32 vcc, s{S_SP}, v{e}
    s_mov_b64 exec, vcc
    ds_add_u32 v15, v{D+k} offset:{LDS_CNT}
    s_mov_b64 exec, -1""")
        a(f"""    ds_read_b32 v12, v11 offset:{LDS_CNT}
    s_waitcnt lgkmcnt(0)
    v_and_b32 v17, 0xffff, v12
    v_cmp_ne_u32 vcc, 0, v12
    v_cvt_f32_u32 v17, v17
    v_lshrrev_b32 v18, 16, v12
    v_add_f32 v16, 1.0, v17
    v_log_f32 v17, v17
    v_log_f32 v16, v16
    v_cndmask_b32 v19, 0, v10, vcc
    s_mov_b64 exec, 0xffff
    ds_write_b128 v1, v[16:19] offset:{LDS_REC}
    s_add_u32 s{S_NEXT}, s{S_TAG}, 0x{EPOCH_STEP:08x}
    s_xor_b32 s{S_TAG}, s{S_NEXT}, 0x{TAG_KEY:08x}
    s_getreg_b32 s{S_ID}, hwreg(HW_REG_XCC_ID, 0, 4)
    s_lshl_b32 s{S_ID}, s{S_ID}, 24
    s_and_b32 s35, s{S_TAG}, 0xffffff
    s_or_b32 s{S_ID}, s{S_ID}, s35
    s_lshl_b32 s35, s{S_SP}, 2
    s_add_u32 s35, s35, s{S_GRP}
    v_mov_b32 v10, s35
    v_mov_b32 v11, s{S_ID}
    s_mov_b64 exec, 1
    global_store_dword v10, v11, {sp(S_WS)} offset:{WS_ID}
    s_mov_b64 exec, -1
    s_waitcnt lgkmcnt(0)
    s_barrier
    s_branch Lh_merge""")

    def helper_merge(self):
        a = self.a
        D, W, D2 = 32, 40, 44
        a("Lh_merge:")
        a(f"""    s_lshl_b32 s34, s{S_HK}, 5
    s_add_u32 s34, s34, s{S_SP}
    s_lshl_b32 s34, s34, 11
    s_add_u32 s34, s34, 0x{WS_BOX:x}
    v_add_u32 v3, s34, v1
    s_bfe_u32 s36, s{S_SP}, 0x10003
    v_lshrrev_b32 v4, 2, v0
    v_lshlrev_b32 v4, 4, v4
    s_lshl_b32 s35, s36, 8
    s_add_u32 s35, s35, s{S_GRP}
    v_add_u32 v4, s35, v4
    global_load_dwordx4 {vr(W)}, v4, {sp(S_WS)} offset:{WS_LSE} sc1
    s_lshl_b32 s35, s36, 9
    s_add_u32 s35, s35, s{S_GRP}
    s_bfe_u32 s36, s{S_SP}, 0x10004
    s_lshl_b32 s36, s36, 8
    s_add_u32 s35, s35, s36
    s_and_b32 s36, s{S_SP}, 3
    s_lshl_b32 s36, s36, 6
    s_add_u32 s35, s35, s36
    s_bfe_u32 s36, s{S_SP}, 0x10002
    s_lshl_b32 s36, s36, 3
    s_add_u32 s35, s35, s36
    v_lshl_add_u32 v5, v6, 4, s35
    v_bfe_u32 v7, v0, 5, 1
    v_lshl_add_u32 v5, v7, 1, v5
    v_bfe_u32 v7, v0, 4, 1
    v_lshl_add_u32 v5, v7, 2, v5
    s_mov_b32 s42, 0x000f000f
    s_mov_b32 s43, 0x000f000f
    s_mov_b32 s52, 0x0c0c0400
    s_mov_b32 s53, 0x04000c0c
    s_mov_b32 s54, 0xffffff00
    s_mov_b32 s49, 0
    v_mov_b32 v2, s{S_GRP}
    v_mov_b32 v7, s{S_NEXT}
    s_barrier
    s_barrier""")

        def oloads(d):
            a(f"    global_load_dwordx4 {vr(d)}, v3, {sp(S_WS)} sc1")
            a(f"    global_load_dwordx4 {vr(d+4)}, v3, {sp(S_WS)} offset:1024 sc1")

        def ocheck(d):
            a(f"""    s_waitcnt vmcnt(3)
    v_perm_b32 v9, v{d+1}, v{d}, s52
    v_perm_b32 v10, v{d+3}, v{d+2}, s53
    v_or_b32 v9, v9, v10
    v_cmp_ne_u32 s[56:57], s{S_TAG}, v9
    s_waitcnt vmcnt(2)
    v_perm_b32 v9, v{d+5}, v{d+4}, s52
    v_perm_b32 v10, v{d+7}, v{d+6}, s53
    v_or_b32 v9, v9, v10
    v_cmp_ne_u32 vcc, s{S_TAG}, v9
    s_or_b64 vcc, vcc, s[56:57]""")

        def allreduce(op, reg, tmp):
            for st in ("row_ror:4", "row_ror:8"):
                a("    s_nop 1")
                a(f"    {op}_dpp v{reg}, v{reg}, v{reg} {st} {DPP}")
            self.rows_reduce(op, reg, tmp)

        def strip(d):
            for i in range(8):
                a(f"    v_and_b32 v{16+i}, s54, v{d+i}")

        a(f"""Lh_lse:
    global_load_dwordx4 {vr(W)}, v4, {sp(S_WS)} offset:{WS_LSE} sc1
    s_add_u32 s49, s49, 0x400
    s_cbranch_scc1 Lh_lse_ok
    s_waitcnt vmcnt(0)
    v_cmp_ne_u32 s[56:57], s{S_TAG}, v{W+1}
    v_cmp_ne_u32 vcc, s{S_TAG}, v{W+3}
    s_or_b64 vcc, vcc, s[56:57]
    s_cbranch_scc1 Lh_lse
Lh_lse_ok:
    s_waitcnt vmcnt(0)""")
        oloads(D)
        a(f"    v_max_f32 v9, v{W}, v{W+2}")
        allreduce("v_max_f32", 9, 10)
        a(f"""    v_sub_f32 v{W}, v{W}, v9
    v_sub_f32 v{W+2}, v{W+2}, v9
    v_exp_f32 v{W}, v{W}
    v_exp_f32 v{W+2}, v{W+2}
    s_mov_b32 s49, 0
    v_add_f32 v9, v{W}, v{W+2}""")
        oloads(D2)
        allreduce("v_add_f32", 9, 10)
        a(f"""    v_rcp_f32 v9, v9
    s_nop 0
    v_mul_f32 v{W}, v{W}, v9
    v_mul_f32 v{W+2}, v{W+2}, v9
    v_mov_b32 v{W+1}, v{W}
    v_mov_b32 v{W+3}, v{W+2}""")
        a("Lh_poll:")
        ocheck(D)
        a("    s_cbranch_scc0 Lh_ready")
        oloads(D)
        ocheck(D2)
        a("    s_cbranch_scc0 Lh_ready2")
        oloads(D2)
        a("""    s_add_u32 s49, s49, 1
    s_bitcmp0_b32 s49, 22
    s_cbranch_scc1 Lh_poll
Lh_ready2:""")
        strip(D2)
        a("    s_branch Lh_sum")
        a("Lh_ready:")
        strip(D)
        a(f"""Lh_sum:
    v_pk_mul_f32 v[12:13], v[{W}:{W+1}], v[16:17]
    v_pk_mul_f32 v[14:15], v[{W}:{W+1}], v[18:19]
    v_pk_fma_f32 v[12:13], v[{W+2}:{W+3}], v[20:21], v[12:13]
    v_pk_fma_f32 v[14:15], v[{W+2}:{W+3}], v[22:23], v[14:15]
    s_cmp_eq_u32 s{S_SP}, 0
    v_permlane32_swap_b32 v12, v13
    v_permlane32_swap_b32 v14, v15
    v_add_f32 v12, v12, v13
    v_add_f32 v14, v14, v15
    s_nop 1
    v_permlane16_swap_b32 v12, v14
    v_add_f32 v12, v12, v14
    s_nop 1
    v_add_f32_dpp v12, v12, v12 row_ror:4 {DPP}
    s_nop 1
    v_add_f32_dpp v12, v12, v12 row_ror:8 {DPP}
    s_mov_b64 exec, s[42:43]
    v_cvt_pk_bf16_f32 v12, v12, v12
    global_store_short v5, v12, {sp(S_OUT)}
    s_cbranch_scc0 Lh_end
    s_mov_b64 exec, 1
    global_store_dword v2, v7, {sp(S_WS)}
Lh_end:
    s_endpgm""")

    def build(self):
        vg = V_BUF + 128
        self.stream()
        return "\n".join([
            HEADER.rstrip("\n"),
            f"; @launch grid=(256,1,1) block=(320,1,1) lds={LDS_O + 8192}",
            DOC,
            '.amdgcn_target "amdgcn-amd-amdhsa--gfx950"',
            ".text",
            "\n".join(self.L),
            '.section .rodata,"a"',
            f""".p2align 6
.amdhsa_kernel {NAME}_kernel
  .amdhsa_next_free_vgpr {vg}
  .amdhsa_next_free_sgpr 64
  .amdhsa_accum_offset {vg}
  .amdhsa_group_segment_fixed_size 0
  .amdhsa_kernarg_size 64
  .amdhsa_user_sgpr_count 2
  .amdhsa_user_sgpr_kernarg_segment_ptr 1
  .amdhsa_system_sgpr_workgroup_id_x 1
.end_amdhsa_kernel
"""])


if __name__ == "__main__":
    open(sys.argv[1], "w").write(Gen().build())
```

```python
import sys

NAME = "standalone__paged_block_table_kv_radixattention__decode"
HEADER = open("cdna_kernels/%s.s.ref" % NAME).read().split("; Override launch")[0]

DOC = """;
;
;"""

LOG2E_OVER_16 = 0x3DB8AA3B
NEG_INF = 0xFF800000
NEG_BIG = 0xFF61B1E6
EPOCH_STEP, TAG_KEY = 0x01010101, 0x734F92D6
KV_BYTES = 0x2000000
WS_ID, WS_LSE, WS_BOX = 128, 512, 1 << 16
LDS_ML, LDS_CNT, LDS_REC, LDS_O = 0, 128, 256, 1024
THROTTLE = 9

V_KOFF, V_VOFF, V_T0, V_T1 = 1, 2, 3, 4
V_J, V_G = 5, 6
V_SCALE, V_NINF, V_G4 = 7, 8, 9
V_M, V_L = 10, 11
V_MASK = 12
V_DA, V_DB = 16, 20
V_X = 24
V_A = 40
V_O = 56
V_Q = 64
V_BUF = 80
V_TAG, V_PA, V_ID = V_SCALE, V_KOFF, V_O
V_LW, V_LR = V_NINF, V_G4

S_Q, S_BT, S_CTX, S_OUT, S_WS = 4, 8, 10, 12, 16
S_WAVE, S_SP, S_HK = 3, 28, 29
S_TAG, S_GRP, S_BASE, S_NEXT = 38, 39, 40, 41
S_ID, S_LOCAL = 50, 51
S_B3, S_DB, S_N3B = 30, 31, 32
V_G43, V_VOFF3, V_VOFFB, V_VOFF3B = V_BUF + 128, V_BUF + 129, V_BUF + 130, V_BUF + 131
DPP = "row_mask:0xf bank_mask:0xf"


def vr(a, n=4):
    return f"v[{a}:{a+n-1}]"


def sp(a):
    return f"s[{a}:{a+1}]"


class Gen:
    def __init__(self, bard=1, split=8, late=0, elsev=0, thr=9):
        self.bard, self.split, self.late, self.elsev = int(bard), int(split), int(late), int(elsev)
        self.thr = int(thr)
        self.L = []
        self.nload = 0

    def a(self, s):
        self.L.append(s)

    def note(self, s):
        self.a(f"    ; {s}")

    def throttle(self):
        if self.nload >= self.thr:
            self.a(f"    s_waitcnt vmcnt({self.thr})")
        self.nload += 4

    def kloads(self, p):
        a = self.a
        b = V_BUF + 32 * p
        if p >= 2:
            a(f"    s_mov_b32 s22, s{44+p}")
        for half in range(2):
            if p == 3:
                a(f"    s_add_u32 s48, s{S_B3}, s{S_DB}\n    s_mov_b32 s22, s{S_N3B}" if half else f"    s_mov_b32 s48, s{S_B3}")
            elif p or half:
                a(f"    s_add_u32 s48, s{S_BASE}, 0x{0x800000*p + 0x8000*half:x}")
            self.throttle()
            for n in range(4):
                so = "s48" if (p or half) else f"s{S_BASE}"
                a(f"    buffer_load_dwordx4 {vr(b+16*half+4*n)}, v{V_KOFF}, s[20:23], {so} offen offset:{128*n} nt")

    def vloads(self, p):
        a = self.a
        b = V_BUF + 32 * p
        a(f"    s_mov_b32 s26, s{44+p}" if p < 3 else f"    s_mov_b32 s26, 0x{KV_BYTES:x}")
        voff = V_VOFF3 if p == 3 else V_VOFF
        for r in range(4):
            if p == 3:
                a(f"    s_add_u32 s48, s{S_B3}, 0x{0x1000*r:x}")
            elif p or r:
                a(f"    s_add_u32 s48, s{S_BASE}, 0x{0x800000*p + 0x1000*r:x}")
            if r % 2 == 0:
                self.throttle()
            for half in range(2):
                so = "s48" if (p or r) else f"s{S_BASE}"
                a(f"    buffer_load_dwordx4 {vr(b+8*r+4*half)}, v{voff if half == 0 else (V_VOFF3B if p == 3 else V_VOFFB)}, s[24:27], {so} offen nt")

    def qk(self, p):
        a = self.a
        b = V_BUF + 32 * p
        rec, x = V_A + 4 * p, V_X + 4 * p
        a(f"    v_sub_u32 v{rec+2}, v{rec+2}, v{V_G43 if p == 3 else V_G4}")
        a("    s_waitcnt vmcnt(16)")
        for n in range(4):
            for half, d in ((0, V_DA), (1, V_DB)):
                c = "0" if n == 0 else vr(d)
                a(f"    v_mfma_f32_16x16x32_bf16 {vr(d)}, {vr(b+16*half+4*n)}, {vr(V_Q+4*n)}, {c}")
        for r in range(4):
            a(f"    v_cmp_lt_i32 {sp(52+2*r)}, {r}, v{rec+2}")
        for r in range(4):
            a(f"    v_cndmask_b32 v{x+r}, v{rec+1}, v{rec}, {sp(52+2*r)}")
        for r in range(4):
            a(f"    v_permlane32_swap_b32 v{V_DA+r}, v{V_DB+r}")
        for r in range(4):
            a(f"    v_add_f32_dpp v{V_DA+r}, v{V_DB+r}, v{V_DA+r} quad_perm:[1,0,3,2] {DPP}")
        for r in range(4):
            a(f"    v_cmp_lt_f32 {sp(52+2*r)}, v{V_NINF}, v{x+r}")
        for r in range(4):
            a(f"    v_cvt_pk_bf16_f32 v{V_DA+r}, 0, v{V_DA+r}")
        for r in range(4):
            a(f"    v_cndmask_b32 v{V_DA+r}, 0, v{V_DA+r}, {sp(52+2*r)}")
        for r in range(4):
            a(f"    v_fmac_f32_dpp v{x+r}, v{V_DA+r}, v{V_SCALE} quad_perm:[0,0,2,2] {DPP}")
        a(f"    v_max3_f32 v{V_M}, v{V_M}, v{x}, v{x+1}")
        a(f"    v_max3_f32 v{V_M}, v{V_M}, v{x+2}, v{x+3}")

    def rows_reduce(self, op, reg, tmp):
        a = self.a
        for swap in ("v_permlane16_swap_b32", "v_permlane32_swap_b32"):
            a(f"    v_mov_b32 v{tmp}, v{reg}")
            a("    s_nop 1")
            a(f"    {swap} v{reg}, v{tmp}")
            a(f"    {op} v{reg}, v{reg}, v{tmp}")

    def handoff_store(self, ins, label):
        self.a(f"""    s_cbranch_scc0 {label}_far
    {ins}
    s_branch {label}_done
{label}_far:
    {ins} sc1
{label}_done:""")

    def softmax(self):
        a = self.a
        t = V_A
        self.rows_reduce("v_max_f32", V_M, V_T0)
        for i in range(16):
            a(f"    v_sub_f32 v{V_X+i}, v{V_X+i}, v{V_M}")
        for i in range(16):
            a(f"    v_exp_f32 v{V_X+i}, v{V_X+i}")
        a(f"    v_add_f32 v{V_L}, v{V_X}, v{V_X+1}")
        a(f"    v_add_f32 v{V_T1}, v{V_X+2}, v{V_X+3}")
        for i in range(4, 16, 2):
            a(f"    v_add_f32 v{V_L}, v{V_L}, v{V_X+i}")
            a(f"    v_add_f32 v{V_T1}, v{V_T1}, v{V_X+i+1}")
        a(f"    v_add_f32 v{V_L}, v{V_L}, v{V_T1}")
        self.rows_reduce("v_add_f32", V_L, V_T0)
        a(f"""    v_lshrrev_b32 v{V_DA}, 3, v{V_J}
    v_lshlrev_b32 v{V_T0}, 5, v{V_DA}
    s_lshl_b32 s35, s{S_WAVE}, 3
    v_add_u32 v{V_T1}, s35, v{V_T0}
    ds_write_b64 v{V_T1}, v[{V_M}:{V_L}] offset:{LDS_ML}
    s_and_b32 s35, s{S_SP}, 15
    s_lshl_b32 s35, s35, 4
    s_lshr_b32 s36, s{S_SP}, 4
    s_lshl_b32 s36, s36, 3
    s_add_u32 s35, s35, s36
    s_add_u32 s35, s35, s{S_GRP}
    v_lshl_add_u32 v{V_DA}, v{V_DA}, 8, s35
    v_mov_b32 v{V_TAG}, s{S_TAG}
    s_waitcnt lgkmcnt(0)
    s_barrier
    ds_read_b128 {vr(t)}, v{V_T0} offset:{LDS_ML}
    ds_read_b128 {vr(t+4)}, v{V_T0} offset:{LDS_ML+16}
    s_waitcnt lgkmcnt(0)
    v_max3_f32 v{V_T0}, v{t}, v{t+2}, v{t+4}
    v_max_f32 v{V_T0}, v{V_T0}, v{t+6}""")
        for i in range(4):
            a(f"    v_sub_f32 v{t+2*i}, v{t+2*i}, v{V_T0}")
        a(f"    v_sub_f32 v{V_M}, v{V_M}, v{V_T0}")
        for i in range(4):
            a(f"    v_exp_f32 v{t+2*i}, v{t+2*i}")
        a(f"    v_exp_f32 v{V_M}, v{V_M}")
        a(f"    v_mul_f32 v{V_L}, v{t}, v{t+1}")
        for i in range(1, 4):
            a(f"    v_fmac_f32 v{V_L}, v{t+2*i}, v{t+2*i+1}")
        a(f"""    v_max_f32 v{V_T1}, 1.0, v{V_L}
    v_log_f32 v{V_L}, v{V_L}
    v_rcp_f32 v{V_T1}, v{V_T1}
    v_add_f32 v{V_DB}, v{V_L}, v{V_T0}
    v_mul_f32 v{V_M}, v{V_M}, v{V_T1}
    v_mov_b32 v{V_DB+1}, s{S_TAG}""")
        for i in range(16):
            a(f"    v_mul_f32 v{V_X+i}, v{V_X+i}, v{V_M}")
        for i in range(16):
            a(f"    v_cvt_pk_bf16_f32 v{V_X+i}, v{V_X+i}, v{V_X+i}")

    def aops(self, p):
        self.note(f"diagonal A operands of tile {p}")
        for r in range(4):
            for i in range(4):
                self.a(f"    v_and_b32 v{V_A+4*r+i}, v{V_X+4*p+r}, v{V_MASK+i}")

    def pv(self, p, cnts):
        a = self.a
        b = V_BUF + 32 * p
        for r in range(4):
            for half in range(2):
                n = 2 * r + half
                if n in cnts:
                    a(f"    s_waitcnt vmcnt({cnts[n]})")
                d = vr(V_O + 4 * half)
                c = "0" if (p == 0 and r == 0) else d
                a(f"    v_mfma_f32_16x16x32_bf16 {d}, {vr(V_A+4*r)}, {vr(b+8*r+4*half)}, {c}")

    def records(self):
        a = self.a
        a(f"""    s_lshl_b32 s35, s{S_WAVE}, 6
    v_mov_b32 v{V_T1}, s35
    s_lshr_b32 s34, s{S_SP}, 1
    s_add_u32 s34, s34, 480
    s_lshl_b32 s34, s34, 1
    s_and_b32 s36, s{S_SP}, 1
    s_add_u32 s34, s34, s36
    s_lshl_b32 s34, s34, 6
    s_add_u32 s34, s34, s{S_HK}
    s_lshl_b32 s34, s34, 9
    s_add_u32 s{S_B3}, s{S_BASE}, 0x1800000
    s_lshl_b32 s36, s36, 3
    s_cmp_eq_u32 s{S_WAVE}, 3
    s_cselect_b32 s{S_B3}, s34, s{S_B3}
    s_cselect_b32 s{S_DB}, 32, 1
    s_cselect_b32 s34, 16, 0
    s_cselect_b32 s35, 0, 8
    s_cselect_b32 s36, s36, 0
    s_lshl_b32 s{S_DB}, s{S_DB}, 15
    v_lshrrev_b32 v{V_DA}, 1, v{V_G}
    v_mad_u32_u24 v{V_T0}, v{V_DA}, s34, v{V_T1}
    v_and_b32 v{V_G43}, 4, v{V_G4}
    v_mad_u32_u24 v{V_G43}, v{V_DA}, s35, v{V_G43}
    v_add_u32 v{V_G43}, s36, v{V_G43}
    v_and_b32 v{V_VOFF3}, 0x7fff, v{V_VOFF}
    v_mad_u32_u24 v{V_VOFF3}, v{V_DA}, s{S_DB}, v{V_VOFF3}
    s_barrier""")
        for p in range(4):
            a(f"    ds_read_b128 {vr(V_A+4*p)}, v{V_T0 if p == 3 else V_T1} offset:{LDS_REC+16*p}")
        a(f"""    v_or_b32 v{V_DA}, 2.0, v{V_VOFF3}
    s_waitcnt lgkmcnt(0)
    v_cmp_eq_u32 vcc, 0, v{V_A+15}
    s_add_u32 s{S_TAG}, s{S_TAG}, 0x{EPOCH_STEP:08x}
    s_xor_b32 s{S_TAG}, s{S_TAG}, 0x{TAG_KEY:08x}
    s_cmp_lt_i32 s33, 1
    s_cselect_b32 s37, 0, 0x{LOG2E_OVER_16:x}""")
        for p in range(4):
            a(f"    v_readfirstlane_b32 s{44+p}, v{V_A+4*p+3}")
        a(f"""    v_readlane_b32 s{S_N3B}, v{V_A+15}, 32
    v_cndmask_b32 v{V_VOFF3}, v{V_VOFF3}, v{V_DA}, vcc
    v_mov_b32 v{V_SCALE}, s37
    v_xor_b32 v{V_VOFF3B}, 0x100, v{V_VOFF3}""")

    def stream(self):
        a = self.a
        a(f""".globl {NAME}_kernel
.p2align 12
.p2align 8
.type {NAME}_kernel,@function
{NAME}_kernel:
    s_load_dwordx2 s[20:21], s[0:1], 8
    s_cmp_ge_u32 s2, 256
    s_cbranch_scc1 Lm_end
    v_readfirstlane_b32 s{S_WAVE}, v0
    s_lshr_b32 s{S_SP}, s2, 3                   ; split
    s_and_b32 s{S_HK}, s2, 7
    s_lshl_b32 s{S_GRP}, s{S_HK}, 10
    s_lshr_b32 s{S_WAVE}, s{S_WAVE}, 6
    s_cmp_eq_u32 s{S_WAVE}, 4
    s_cbranch_scc1 Lh_table
    v_bfe_u32 v{V_G}, v0, 4, 2
    v_and_b32 v{V_T0}, 7, v0
    v_lshlrev_b32 v{V_KOFF}, 12, v{V_T0}
    v_bfe_u32 v{V_T0}, v0, 3, 1
    v_lshl_add_u32 v{V_KOFF}, v{V_T0}, 6, v{V_KOFF}
    v_lshl_add_u32 v{V_KOFF}, v{V_G}, 4, v{V_KOFF}            ; K: (j&7)*4096 + (j>>3)*64 + g*16
    s_lshl_b32 s{S_BASE}, s{S_WAVE}, 5
    s_add_u32 s{S_BASE}, s{S_BASE}, s{S_SP}
    s_lshl_b32 s{S_BASE}, s{S_BASE}, 7
    s_add_u32 s{S_BASE}, s{S_BASE}, s{S_HK}
    s_lshl_b32 s{S_BASE}, s{S_BASE}, 9
    s_mov_b32 s22, 0x{KV_BYTES:x}
    s_mov_b32 s23, 0x20000
    s_mov_b32 s27, 0x20000
    v_and_b32 v{V_J}, 15, v0
    v_lshlrev_b32 v{V_T0}, 9, v{V_T0}
    v_and_b32 v{V_T1}, 1, v0
    v_lshl_add_u32 v{V_T0}, v{V_T1}, 6, v{V_T0}
    v_lshl_add_u32 v{V_T0}, v{V_G}, 4, v{V_T0}
    v_add_u32 v{V_T0}, s{S_GRP}, v{V_T0}                   ; Q: head*1024 + (j>>3)*512 + (j&1)*64 + g*16
    v_lshlrev_b32 v{V_VOFF}, 14, v{V_G}
    v_lshl_add_u32 v{V_VOFF}, v{V_J}, 4, v{V_VOFF}            ; V: g*16384 + j*16
    s_cmp_eq_u32 s{S_WAVE}, 0
    s_cselect_b32 s35, 0x100, 0
    v_xor_b32 v{V_VOFF}, s35, v{V_VOFF}
    v_xor_b32 v{V_VOFFB}, 0x100, v{V_VOFF}
    v_lshlrev_b32 v{V_T1}, 4, v{V_T1}
    v_mov_b32 v{V_M}, 0xffff
    v_lshlrev_b32 v{V_T1}, v{V_T1}, v{V_M}
    v_bfe_u32 v{V_M}, v0, 1, 2""")
        for i in range(4):
            a(f"    v_cmp_eq_u32 {sp(52+2*i)}, {i}, v{V_M}")
        a(f"    v_mov_b32 v{V_NINF}, 0x{NEG_INF:x}")
        a(f"    v_mov_b32 v{V_M}, 0x{NEG_BIG:x}")
        for i in range(4):
            a(f"    v_cndmask_b32 v{V_MASK+i}, 0, v{V_T1}, {sp(52+2*i)}")
        a(f"""    v_lshlrev_b32 v{V_G4}, 2, v{V_G}
    s_waitcnt lgkmcnt(0)""")
        self.kloads(0)
        a(f"""    s_load_dwordx2 s[24:25], s[0:1], 16
    s_load_dwordx2 {sp(S_Q)}, s[0:1], 0
    s_load_dwordx2 {sp(S_CTX)}, s[0:1], 32
    s_load_dwordx2 {sp(S_WS)}, s[0:1], 56
    s_waitcnt lgkmcnt(0)
    s_load_dword s{S_TAG}, {sp(S_WS)}, s{S_GRP}
    s_load_dword s33, {sp(S_CTX)}, 0""")
        for n in range(4):
            a(f"    global_load_dwordx4 {vr(V_Q+4*n)}, v{V_T0}, {sp(S_Q)} offset:{128*n}")
        self.kloads(1)
        a("    s_branch Lm_b")
        self.helper_table()
        a("Lm_b:")
        self.records()
        self.kloads(2)
        self.qk(0)
        self.kloads(3)
        a(f"""    v_and_b32 v{V_T0}, 31, v0
    v_lshl_add_u32 v{V_T0}, v{V_T0}, 2, s{S_GRP}
    s_getreg_b32 s{S_ID}, hwreg(HW_REG_XCC_ID, 0, 4)
    s_and_b32 s35, s{S_TAG}, 0xffffff
    s_lshl_b32 s{S_ID}, s{S_ID}, 24
    s_or_b32 s{S_ID}, s{S_ID}, s35
    global_load_dword v{V_ID}, v{V_T0}, {sp(S_WS)} offset:{WS_ID} sc1""")
        self.qk(1)
        self.vloads(0)
        a(f"""    s_lshl_b32 s35, s{S_HK}, 1
    s_and_b32 s36, s{S_WAVE}, 1
    s_add_u32 s35, s35, s36
    s_lshl_b32 s35, s35, 9
    s_add_u32 s35, s35, s{S_SP}
    s_lshl_b32 s35, s35, 6
    s_add_u32 s35, s35, 0x{WS_BOX:x}
    v_and_b32 v{V_PA}, 3, v0
    v_lshl_add_u32 v{V_PA}, v{V_PA}, 4, s35
    v_bfe_u32 v{V_T1}, v0, 2, 4
    v_lshl_add_u32 v{V_PA}, v{V_T1}, 11, v{V_PA}""")
        self.qk(2)
        a("    s_branch Lm_c")
        a(".p2align 12")
        self.helper_merge()
        a("Lm_c:")
        self.vloads(1)
        a(f"""    s_waitcnt vmcnt(16)
    v_cmp_ne_u32 vcc, s{S_ID}, v{V_ID}
    s_cmp_eq_u64 vcc, 0
    s_cselect_b32 s{S_LOCAL}, 1, 0""")
        self.qk(3)
        a(f"""    s_cmp_lt_u32 s{S_WAVE}, 2
    s_cbranch_scc1 Lm_v2pub""")
        n0 = self.nload
        self.vloads(2)
        a("    s_branch Lm_v2done")
        a("Lm_v2pub:")
        self.nload = n0
        for tile, base, voff, size in ((2, None, V_VOFF, "s46"), (3, S_B3, V_VOFF3, f"0x{KV_BYTES:x}")):
            a(f"    s_mov_b32 s26, {size}")
            self.throttle()
            for r in range(4):
                if tile == 2:
                    a(f"    s_add_u32 s48, s{S_BASE}, 0x{0x1000000 + 0x1000*r:x}")
                else:
                    a(f"    s_add_u32 s48, s{S_B3}, 0x{0x1000*r:x}")
                a(f"    buffer_load_dwordx4 {vr(V_BUF+32*tile+8*r)}, v{voff}, s[24:27], s48 offen nt")
        a("Lm_v2done:")
        self.softmax()
        self.aops(0)
        a(f"""    s_cmp_lg_u32 s{S_WAVE}, 3
    s_cbranch_scc1 Lm_nolse
    s_mov_b64 exec, 0x101
    s_cmp_lg_u32 s{S_LOCAL}, 0""")
        self.handoff_store(f"global_store_dwordx2 v{V_DA}, v[{V_DB}:{V_DB+1}], {sp(S_WS)} offset:{WS_LSE}", "Lm_lse")
        a("""    s_mov_b64 exec, -1
Lm_nolse:""")
        self.pv(0, {0: 16})
        b3 = V_BUF + 96
        t = V_DA

        def touch():
            self.note("bring the lines of this workgroup's inbox into L2 (the loaded words are not used)")
            a(f"""    s_mov_b64 exec, 15
    global_load_dword v{V_T1}, v{V_T0}, {sp(S_WS)} sc1
    s_mov_b64 exec, -1""")

        def pk_add(d, x, y):
            for k in range(0, 4, 2):
                a(f"    v_pk_add_f32 v[{d+k}:{d+k+1}], v[{x+k}:{x+k+1}], v[{y+k}:{y+k+1}]")

        def middle():
            self.aops(1)
            self.pv(1, {0: 17})
            self.aops(2)
            self.pv(2, {0: 9})
            self.aops(3)

        a(f"""    s_lshl_b32 s35, s{S_HK}, 5
    s_add_u32 s35, s35, s{S_SP}
    s_lshl_b32 s35, s35, 2
    s_add_u32 s35, s35, s{S_WAVE}
    s_lshl_b32 s35, s35, 9
    s_add_u32 s35, s35, 0x{WS_BOX:x}
    v_lshl_add_u32 v{V_T0}, v{V_J}, 7, s35
    v_and_b32 v{V_LW}, 63, v0
    v_lshlrev_b32 v{V_LW}, 4, v{V_LW}
    s_cmp_lt_u32 s{S_WAVE}, 2
    s_cbranch_scc1 Lm_pub""")
        n0 = self.nload
        self.vloads(3)
        touch()
        if self.bard:
            a("    s_barrier")
        a(f"""    s_lshl_b32 s35, s{S_WAVE}, 10
    v_add_u32 v{V_LW}, s35, v{V_LW}""")
        middle()
        self.pv(3, {n: 8 - n for n in range(8)})
        a(f"""    s_nop 5
    ds_write_b128 v{V_LW}, {vr(V_O)} offset:{LDS_O-1024}
    s_nop 0
    ds_write_b128 v{V_LW}, {vr(V_O+4)} offset:{LDS_O+3072-1024}
    s_waitcnt lgkmcnt(0)
    s_barrier
Lm_end:
    s_endpgm
Lm_pub:""")
        self.nload = n0
        b2 = V_BUF + 64
        for tile, voff, size in ((2, V_VOFFB, "s46"), (3, V_VOFF3B, f"0x{KV_BYTES:x}")):
            if tile == 2 + self.late and self.bard:
                a("    s_barrier")
            a(f"    s_mov_b32 s26, {size}")
            self.throttle()
            for r in range(4):
                if tile == 2:
                    a(f"    s_add_u32 s48, s{S_BASE}, 0x{0x1000000 + 0x1000*r:x}")
                else:
                    a(f"    s_add_u32 s48, s{S_B3}, 0x{0x1000*r:x}")
                a(f"    buffer_load_dwordx4 {vr(V_BUF+32*tile+8*r+4)}, v{voff}, s[24:27], s48 offen nt")
        touch()
        a(f"""    s_mul_i32 s35, s{S_WAVE}, 3072
    v_add_u32 v{V_LR}, s35, v{V_LW}
    s_sub_u32 s35, 3072, s35
    v_add_u32 v{V_LW}, s35, v{V_LW}""")
        for k in range(4):
            a(f"    s_mov_b32 s{52+k}, 0x0706050{k}")
        self.aops(1)
        self.pv(1, {0: 17})
        self.aops(2)
        for r in range(4):
            for i in range(4):
                a(f"    v_and_b32 v{V_Q+4*r+i}, v{V_X+12+r}, v{V_MASK+i}")
        a("    s_waitcnt vmcnt(9)")
        for A, b in ((V_A, b2), (V_Q, b3)):
            for r in range(4):
                a(f"    v_mfma_f32_16x16x32_bf16 {vr(V_O)}, {vr(A+4*r)}, {vr(b+8*r)}, {vr(V_O)}")
        a(f"""    s_cmp_lg_u32 s{S_LOCAL}, 0
    s_nop 6
    ds_write_b128 v{V_LW}, {vr(V_O)} offset:{LDS_O}""")
        seq = [(A + 4 * r, b + 8 * r + 4) for A, b in ((V_A, b2), (V_Q, b3)) for r in range(4)]
        early = 8 - self.split
        for n in range(early):
            a(f"    s_waitcnt vmcnt({8-n})")
            a(f"    v_mfma_f32_16x16x32_bf16 {vr(V_O+4)}, {vr(seq[n][0])}, {vr(seq[n][1])}, {vr(V_O+4)}")
        a(f"""    s_waitcnt lgkmcnt(0)
    s_barrier
    ds_read_b128 {vr(V_DA)}, v{V_LR} offset:{LDS_O}
    ds_read_b128 {vr(V_DB)}, v{V_LR} offset:{LDS_O+1024}
    ds_read_b128 {vr(V_X)}, v{V_LR} offset:{LDS_O+2048}
    s_waitcnt lgkmcnt(1)""")
        pk_add(V_DA, V_DA, V_DB)
        a("    s_waitcnt lgkmcnt(0)")
        pk_add(V_O + 4, V_O + 4, V_X)
        pk_add(V_O + 4, V_O + 4, V_DA)
        a("    s_nop 0")
        for n in range(early, 8):
            a(f"    s_waitcnt vmcnt({8-n})")
            a(f"    v_mfma_f32_16x16x32_bf16 {vr(V_O+4)}, {vr(seq[n][0])}, {vr(seq[n][1])}, {vr(V_O+4)}")
        a("    s_nop 7")
        for k in range(4):
            a(f"    v_perm_b32 v{V_O+4+k}, v{V_O+4+k}, v{V_TAG}, s{52+k}")
        a(f"""    s_cbranch_scc0 Lm_far
    global_store_dwordx4 v{V_PA}, {vr(V_O+4)}, {sp(S_WS)}
    s_endpgm
Lm_far:
    global_store_dwordx4 v{V_PA}, {vr(V_O+4)}, {sp(S_WS)} sc1
    s_endpgm""")

    def helper_table(self):
        a = self.a
        D, E = 32, 48
        a("Lh_table:")
        a(f"""    s_setprio 3
    s_load_dwordx4 s[{S_BT}:{S_BT+3}], s[0:1], 24
    s_load_dwordx2 {sp(S_OUT)}, s[0:1], 40
    s_load_dwordx2 {sp(S_WS)}, s[0:1], 56
    v_and_b32 v0, 63, v0
    v_lshlrev_b32 v1, 4, v0
    v_lshlrev_b32 v2, 2, v0
    v_mov_b32 v9, 0
    s_waitcnt lgkmcnt(0)
    global_load_dwordx4 {vr(E)}, v1, {sp(S_BT)}
    global_load_dwordx4 {vr(E+4)}, v1, {sp(S_BT)} offset:1024
    s_load_dword s33, {sp(S_CTX)}, 0
    s_load_dword s{S_TAG}, {sp(S_WS)}, s{S_GRP}
    ds_write_b32 v2, v9 offset:{LDS_CNT}
    v_and_b32 v6, 3, v0
    v_bfe_u32 v11, v0, 2, 2
    v_lshl_add_u32 v11, v6, 2, v11
    v_and_or_b32 v11, v0, 16, v11
    v_lshlrev_b32 v11, 2, v11
    s_and_b32 s34, s{S_SP}, 1
    s_sub_u32 s34, s34, 480
    v_mov_b32 v10, 0x{KV_BYTES:x}
    s_movk_i32 s37, 0xfe00
    s_waitcnt lgkmcnt(0)
    s_cmp_lt_i32 s33, 1
    s_cselect_b32 s33, 0x2000, s33
    s_min_u32 s33, s33, 0x2000
    s_and_b32 s36, s33, 15
    s_lshl_b32 s36, s36, 16
    s_lshr_b32 s33, s33, 4
    v_sub_u32 v12, s33, v2
    v_mov_b32 v13, s36""")
        for k in range(8):
            if k == 4:
                a("    v_subrev_u32 v12, 0x100, v12")
            a(f"""    v_cmp_eq_u32 vcc, {k & 3}, v12
    v_cmp_lt_i32 s[52:53], {k & 3}, v12
    s_nop 0
    v_cndmask_b32 v{D+k}, 0, v13, vcc
    v_cndmask_b32 v{D+k}, v{D+k}, 1, s[52:53]""")
        for k in range(8):
            e = E + k
            if k % 4 == 0:
                a(f"    s_waitcnt vmcnt({1 - k // 4})")
            a(f"""    v_lshl_add_u32 v14, v{e}, 1, s34
    v_max_i32 v14, v14, v{e}
    v_lshrrev_b32 v15, 3, v14
    v_and_b32 v14, 31, v14
    v_and_or_b32 v14, v{e}, s37, v14
    v_and_b32 v15, 0x7c, v15
    v_cmp_eq_u32 vcc, s{S_SP}, v14
    s_mov_b64 exec, vcc
    ds_add_u32 v15, v{D+k} offset:{LDS_CNT}
    s_mov_b64 exec, -1""")
        a(f"""    ds_read_b32 v12, v11 offset:{LDS_CNT}
    s_waitcnt lgkmcnt(0)
    v_and_b32 v17, 0xffff, v12
    v_cmp_ne_u32 vcc, 0, v12
    v_cvt_f32_u32 v17, v17
    v_lshrrev_b32 v18, 16, v12
    v_add_f32 v16, 1.0, v17
    v_log_f32 v17, v17
    v_log_f32 v16, v16
    v_cndmask_b32 v19, 0, v10, vcc
    s_mov_b64 exec, 0x1ffff
    ds_write_b128 v1, v[16:19] offset:{LDS_REC}
    s_add_u32 s{S_NEXT}, s{S_TAG}, 0x{EPOCH_STEP:08x}
    s_xor_b32 s{S_TAG}, s{S_NEXT}, 0x{TAG_KEY:08x}
    s_getreg_b32 s{S_ID}, hwreg(HW_REG_XCC_ID, 0, 4)
    s_lshl_b32 s{S_ID}, s{S_ID}, 24
    s_and_b32 s35, s{S_TAG}, 0xffffff
    s_or_b32 s{S_ID}, s{S_ID}, s35
    s_lshl_b32 s35, s{S_SP}, 2
    s_add_u32 s35, s35, s{S_GRP}
    v_mov_b32 v10, s35
    v_mov_b32 v11, s{S_ID}
    s_mov_b64 exec, 1
    global_store_dword v10, v11, {sp(S_WS)} offset:{WS_ID}
    s_mov_b64 exec, -1
    s_waitcnt lgkmcnt(0)
    s_barrier
    s_branch Lh_merge""")

    def helper_merge(self):
        a = self.a
        D, W, D2 = 32, 40, 44
        a("Lh_merge:")
        a(f"""    s_lshl_b32 s34, s{S_HK}, 5
    s_add_u32 s34, s34, s{S_SP}
    s_lshl_b32 s34, s34, 11
    s_add_u32 s34, s34, 0x{WS_BOX:x}
    v_add_u32 v3, s34, v1
    s_bfe_u32 s36, s{S_SP}, 0x10003
    v_lshrrev_b32 v4, 2, v0
    v_lshlrev_b32 v4, 4, v4
    s_lshl_b32 s35, s36, 8
    s_add_u32 s35, s35, s{S_GRP}
    v_add_u32 v4, s35, v4
    global_load_dwordx4 {vr(W)}, v4, {sp(S_WS)} offset:{WS_LSE} sc1
    s_lshl_b32 s35, s36, 9
    s_add_u32 s35, s35, s{S_GRP}
    s_bfe_u32 s36, s{S_SP}, 0x10004
    s_lshl_b32 s36, s36, 8
    s_add_u32 s35, s35, s36
    s_and_b32 s36, s{S_SP}, 3
    s_lshl_b32 s36, s36, 6
    s_add_u32 s35, s35, s36
    s_bfe_u32 s36, s{S_SP}, 0x10002
    s_lshl_b32 s36, s36, 3
    s_add_u32 s35, s35, s36
    v_lshl_add_u32 v5, v6, 4, s35
    v_bfe_u32 v7, v0, 5, 1
    v_lshl_add_u32 v5, v7, 1, v5
    v_bfe_u32 v7, v0, 4, 1
    v_lshl_add_u32 v5, v7, 2, v5
    s_mov_b32 s42, 0x000f000f
    s_mov_b32 s43, 0x000f000f
    s_mov_b32 s52, 0x0c0c0400
    s_mov_b32 s53, 0x04000c0c
    s_mov_b32 s54, 0xffffff00
    s_mov_b32 s49, 0
    v_mov_b32 v2, s{S_GRP}
    v_mov_b32 v7, s{S_NEXT}
    s_barrier
    s_barrier""")
        if self.bard:
            a("    s_barrier")

        def oloads(d):
            a(f"    global_load_dwordx4 {vr(d)}, v3, {sp(S_WS)} sc1")
            a(f"    global_load_dwordx4 {vr(d+4)}, v3, {sp(S_WS)} offset:1024 sc1")

        def ocheck(d):
            a(f"""    s_waitcnt vmcnt(3)
    v_perm_b32 v9, v{d+1}, v{d}, s52
    v_perm_b32 v10, v{d+3}, v{d+2}, s53
    v_or_b32 v9, v9, v10
    v_cmp_ne_u32 s[56:57], s{S_TAG}, v9
    s_waitcnt vmcnt(2)
    v_perm_b32 v9, v{d+5}, v{d+4}, s52
    v_perm_b32 v10, v{d+7}, v{d+6}, s53
    v_or_b32 v9, v9, v10
    v_cmp_ne_u32 vcc, s{S_TAG}, v9
    s_or_b64 vcc, vcc, s[56:57]""")

        def allreduce(op, reg, tmp):
            for st in ("row_ror:4", "row_ror:8"):
                a("    s_nop 1")
                a(f"    {op}_dpp v{reg}, v{reg}, v{reg} {st} {DPP}")
            self.rows_reduce(op, reg, tmp)

        def strip(d):
            for i in range(8):
                a(f"    v_and_b32 v{16+i}, s54, v{d+i}")

        a(f"""Lh_lse:
    global_load_dwordx4 {vr(W)}, v4, {sp(S_WS)} offset:{WS_LSE} sc1
    s_add_u32 s49, s49, 0x400
    s_cbranch_scc1 Lh_lse_ok
    s_waitcnt vmcnt(0)
    v_cmp_ne_u32 s[56:57], s{S_TAG}, v{W+1}
    v_cmp_ne_u32 vcc, s{S_TAG}, v{W+3}
    s_or_b64 vcc, vcc, s[56:57]
    s_cbranch_scc1 Lh_lse
Lh_lse_ok:
    s_waitcnt vmcnt(0)""")
        oloads(D)
        a(f"    v_max_f32 v9, v{W}, v{W+2}")
        allreduce("v_max_f32", 9, 10)
        a(f"""    v_sub_f32 v{W}, v{W}, v9
    v_sub_f32 v{W+2}, v{W+2}, v9
    v_exp_f32 v{W}, v{W}
    v_exp_f32 v{W+2}, v{W+2}
    s_mov_b32 s49, 0
    v_add_f32 v9, v{W}, v{W+2}""")
        oloads(D2)
        allreduce("v_add_f32", 9, 10)
        a(f"""    v_rcp_f32 v9, v9
    s_nop 0
    v_mul_f32 v{W}, v{W}, v9
    v_mul_f32 v{W+2}, v{W+2}, v9
    v_mov_b32 v{W+1}, v{W}
    v_mov_b32 v{W+3}, v{W+2}""")
        a("Lh_poll:")
        ocheck(D)
        a("    s_cbranch_scc0 Lh_ready")
        oloads(D)
        ocheck(D2)
        a("    s_cbranch_scc0 Lh_ready2")
        oloads(D2)
        a("""    s_add_u32 s49, s49, 1
    s_bitcmp0_b32 s49, 22
    s_cbranch_scc1 Lh_poll
Lh_ready2:""")
        strip(D2)
        a("    s_branch Lh_sum")
        a("Lh_ready:")
        strip(D)
        a(f"""Lh_sum:
    v_pk_mul_f32 v[12:13], v[{W}:{W+1}], v[16:17]
    v_pk_mul_f32 v[14:15], v[{W}:{W+1}], v[18:19]
    v_pk_fma_f32 v[12:13], v[{W+2}:{W+3}], v[20:21], v[12:13]
    v_pk_fma_f32 v[14:15], v[{W+2}:{W+3}], v[22:23], v[14:15]
    s_cmp_eq_u32 s{S_SP}, 0
    v_permlane32_swap_b32 v12, v13
    v_permlane32_swap_b32 v14, v15
    v_add_f32 v12, v12, v13
    v_add_f32 v14, v14, v15
    s_nop 1
    v_permlane16_swap_b32 v12, v14
    v_add_f32 v12, v12, v14
    s_nop 1
    v_add_f32_dpp v12, v12, v12 row_ror:4 {DPP}
    s_nop 1
    v_add_f32_dpp v12, v12, v12 row_ror:8 {DPP}
    s_mov_b64 exec, s[42:43]
    v_cvt_pk_bf16_f32 v12, v12, v12
    global_store_short v5, v12, {sp(S_OUT)}
    s_cbranch_scc0 Lh_end
    s_mov_b64 exec, 1
    global_store_dword v2, v7, {sp(S_WS)}
Lh_end:
    s_endpgm""")

    def build(self):
        vg = V_BUF + 132
        self.stream()
        return "\n".join([
            HEADER.rstrip("\n"),
            f"; @launch grid=(256,1,1) block=(320,1,1) lds={LDS_O + 6144}",
            DOC,
            '.amdgcn_target "amdgcn-amd-amdhsa--gfx950"',
            ".text",
            "\n".join(self.L),
            '.section .rodata,"a"',
            f""".p2align 6
.amdhsa_kernel {NAME}_kernel
  .amdhsa_next_free_vgpr {vg}
  .amdhsa_next_free_sgpr 64
  .amdhsa_accum_offset {vg}
  .amdhsa_group_segment_fixed_size 0
  .amdhsa_kernarg_size 64
  .amdhsa_user_sgpr_count 2
  .amdhsa_user_sgpr_kernarg_segment_ptr 1
  .amdhsa_system_sgpr_workgroup_id_x 1
.end_amdhsa_kernel
"""])


if __name__ == "__main__":
    open(sys.argv[1], "w").write(Gen(**dict(x.split("=") for x in sys.argv[2:])).build())
```
